```python
import torch

def _softmax(x, axis=-1):
    return torch.softmax(x, dim=axis)
def _gelu(x):
    return torch.nn.functional.gelu(x, approximate="tanh")
def _silu(x):
    return torch.nn.functional.silu(x)
def _sigmoid(x):
    return torch.sigmoid(x)
def _layernorm(x, axis=-1, eps=1e-5):
    m = x.mean(dim=axis, keepdim=True)
    v = x.var(dim=axis, keepdim=True, unbiased=False)
    return (x - m) / torch.sqrt(v + eps)
def _scatter_add(tgt, idx, src, axis=0):
    return tgt.clone().index_add_(axis, idx, src)
def _segment_sum(src, seg, n):
    out = torch.zeros((n,) + src.shape[1:], dtype=src.dtype)
    return out.index_add_(0, seg, src)
def _pad(x, pw):
    flat = tuple(v for pair in reversed(pw) for v in pair)
    return torch.nn.functional.pad(x, flat)

kernel_name = 'recurrent_scan__mha_block_cached__geglu_ffn__prompt'

def setup_inputs():

    _w = (lambda a: (lambda t: t.to(torch.bfloat16) if t.is_floating_point() else t)(torch.as_tensor(a)))
    def _A_setup():
        B, Sq, D = 1, 2048, 576
        H, Sk, Dh = 32, 2048, 128
        return {
            "x": _w((lambda *s: torch.randn(*s, dtype=torch.bfloat16) * 0.05)(B, Sq, D)),
            "k_cache": _w((lambda *s: torch.randn(*s, dtype=torch.bfloat16) * 0.8)(B, H, Sk, Dh)),
            "v_cache": _w((lambda *s: torch.randn(*s, dtype=torch.bfloat16) * 0.2)(B, H, Sk, Dh)),
            "wq": _w((lambda *s: torch.randn(*s, dtype=torch.bfloat16) * 0.8)(D, H * Dh) * (D ** -0.5)),
            "wo": _w((lambda *s: torch.randn(*s, dtype=torch.bfloat16) * 0.2)(H * Dh, D) * ((H * Dh) ** -0.5)),
        }
    _A_in = _A_setup()

    def _B_setup():
        B, S, D, F = 1, 2048, 576, 4608
        return {
            "x": _w((lambda *s: torch.randn(*s, dtype=torch.bfloat16) * 0.05)(B, S, D)),
            "w_gate": _w((lambda *s: torch.randn(*s, dtype=torch.bfloat16) * 0.1)(D, F)),
            "w_up": _w((lambda *s: torch.randn(*s, dtype=torch.bfloat16) * 0.1)(D, F)),
            "w_down": _w((lambda *s: torch.randn(*s, dtype=torch.bfloat16) * 0.1)(F, D)),
        }
    _B_in = _B_setup()

    return {
        "A_x": _A_in["x"],
        "A_k_cache": _A_in["k_cache"],
        "A_v_cache": _A_in["v_cache"],
        "A_wq": _A_in["wq"],
        "A_wo": _A_in["wo"],
        "B_x": _B_in["x"],
        "B_w_gate": _B_in["w_gate"],
        "B_w_up": _B_in["w_up"],
        "B_w_down": _B_in["w_down"],
    }

def reference(A_x, A_k_cache, A_v_cache, A_wq, A_wo, B_x, B_w_gate, B_w_up, B_w_down):
    def _A_ref(x, k_cache, v_cache, wq, wo):
        B, Sq, D = x.shape
        H, Dh = 32, 128
        q = (lambda x, *d: x.permute(*d))((x @ wq).reshape(B, Sq, H, Dh), 0, 2, 1, 3)
        scores = torch.einsum("bhqd,bhkd->bhqk", q, k_cache) * (Dh ** -0.5)
        p = _softmax(scores, axis=-1)
        o = torch.einsum("bhqk,bhkd->bhqd", p, v_cache)
        return (lambda x, *d: x.permute(*d))(o, 0, 2, 1, 3).reshape(B, Sq, H * Dh) @ wo

    def _B_ref(x, w_gate, w_up, w_down):
        return (_gelu(x @ w_gate) * (x @ w_up)) @ w_down

    x = A_x
    xn = _layernorm(x, axis=-1)
    s = _A_ref(xn, A_k_cache, A_v_cache, A_wq, A_wo)
    g = _silu(_B_ref(xn, B_w_gate, B_w_up, B_w_down))
    return x + s * g
```

```python
import struct

def f2u(x):
    return struct.unpack("<I", struct.pack("<f", x))[0]

def fhex(x):
    return "0x%08x" % f2u(x)

class Op:
    __slots__ = ("t", "lds", "vm", "nl", "nv", "drain_l", "drain_v")
    def __init__(self, t, lds=None, vm=None, nl=None, nv=None, drain_l=False, drain_v=False):
        self.t = t
        self.lds = lds
        self.vm = vm
        self.nl = nl
        self.nv = nv
        self.drain_l = drain_l
        self.drain_v = drain_v

class Tracker:
    def __init__(self):
        self.l_issued = 0; self.l_done = 0; self.l_pos = {}
        self.v_issued = 0; self.v_done = 0; self.v_pos = {}
    def step(self, op):
        ln = vn = None
        need = 0
        if op.drain_l: need = self.l_issued
        for g in (op.nl or []):
            assert g in self.l_pos, ("lds tag never issued", g, op.t)
            need = max(need, self.l_pos[g])
        if need > self.l_done:
            ln = min(self.l_issued - need, 15)
            self.l_done = self.l_issued - ln
        need = 0
        if op.drain_v: need = self.v_issued
        for g in (op.nv or []):
            assert g in self.v_pos, ("vm tag never issued", g, op.t)
            need = max(need, self.v_pos[g])
        if need > self.v_done:
            vn = min(self.v_issued - need, 63)
            self.v_done = self.v_issued - vn
        if op.lds is not None:
            self.l_issued += 1; self.l_pos[op.lds] = self.l_issued
        if op.vm is not None:
            self.v_issued += 1; self.v_pos[op.vm] = self.v_issued
        return (ln, vn)

def mn(a, b):
    if a is None: return b
    if b is None: return a
    return min(a, b)

def render(op, w):
    out = []
    ln, vn = w
    if ln is not None or vn is not None:
        parts = []
        if vn is not None: parts.append("vmcnt(%d)" % vn)
        if ln is not None: parts.append("lgkmcnt(%d)" % ln)
        out.append("    s_waitcnt " + " ".join(parts))
    if op.t is not None:
        t = op.t
        out.append(t if t.endswith(":") else "    " + t)
    return out

class Prog:
    def __init__(self):
        self.segs = []
        self.cur = None
    def lin(self):
        self.cur = []
        self.segs.append(("lin", self.cur))
        return self.cur
    def loop(self, iters):
        self.segs.append(("loop", iters))
        self.cur = None
    def e(self, t, **kw):
        if self.cur is None: self.lin()
        self.cur.append(Op(t, **kw))
    def text(self):
        import sys, re
        abl = [a[6:] for a in sys.argv if a.startswith("--abl=")]
        tr = Tracker()
        out = []
        for kind, body in self.segs:
            if kind == "lin":
                for op in body:
                    out += render(op, tr.step(op))
            else:
                n = len(body[0])
                ws = [(None, None)] * n
                for it in body:
                    assert len(it) == n, "loop iterations differ in length"
                    for i, op in enumerate(it):
                        assert op.t == body[0][i].t, ("loop text differs", op.t, body[0][i].t)
                        w = tr.step(op)
                        ws[i] = (mn(ws[i][0], w[0]), mn(ws[i][1], w[1]))
                for i, op in enumerate(body[0]):
                    r = render(op, ws[i])
                    if abl and op.t and any(re.search(a, op.t) for a in abl): r = r[:-1]
                    out += r
        return "\n".join(out) + "\n"

def vr(b, n=1):
    return "v%d" % b if n == 1 else "v[%d:%d]" % (b, b + n - 1)
def ar(b, n=1):
    return "a%d" % b if n == 1 else "a[%d:%d]" % (b, b + n - 1)
def sr(b, n=1):
    return "s%d" % b if n == 1 else "s[%d:%d]" % (b, b + n - 1)
def rr(spec, n=1):
    return (vr if spec[0] == "v" else ar)(spec[1], n)
```

```python
import sys, math
from asmlib import *

NAME = "recurrent_scan__mha_block_cached__geglu_ffn__prompt"
PROFILE = "--prof" in sys.argv

WS_XN = 0
XN_BYTES = 2048 * 576 * 2
WS_A3 = 4 << 20
A3_KS = 272
A3_BLK = A3_KS * 4096
A3_BYTES = 32 * A3_BLK
WS_P = 48 << 20
P_SLICE = 2048 * 576 * 4
WS_PROF = 200 << 20

LOG2E = 1.4426950408889634

def srd(p, d, base, nbytes, add=None):
    if add is None:
        p.e("s_mov_b32 s%d, s%d" % (d, base))
        p.e("s_mov_b32 s%d, s%d" % (d + 1, base + 1))
    else:
        p.e("s_add_u32 s%d, s%d, %s" % (d, base, add))
        p.e("s_addc_u32 s%d, s%d, 0" % (d + 1, base + 1))
    p.e("s_mov_b32 s%d, %s" % (d + 2, nbytes))
    p.e("s_mov_b32 s%d, 0x00020000" % (d + 3))

def profiler(p, which, sW):
    e = p.e
    on = ("--prof=" + which) in sys.argv
    sPROF = 80
    nst = [0]
    def stamp():
        if on:
            e("s_memtime s[96:97]", drain_l=True)
            e("s_memrealtime s[98:99]")
            e("s_waitcnt lgkmcnt(0)")
            e("s_mov_b32 s%d, s96" % (sPROF + 2 * nst[0]))
            e("s_mov_b32 s%d, s98" % (sPROF + 2 * nst[0] + 1))
            nst[0] += 1
    def store():
        if not on: return
        e("s_waitcnt vmcnt(0)")
        stamp()
        e("s_load_dwordx2 s[4:5], s[0:1], 88")
        e("s_lshl_b32 s3, s2, 2")
        e("s_add_u32 s3, s3, s%d" % sW)
        e("s_lshl_b32 s3, s3, 7")
        e("s_add_u32 s3, s3, %d" % WS_PROF)
        e("s_waitcnt lgkmcnt(0)")
        srd(p, 8, 4, 128, "s3")
        e("v_mov_b32 v1, 0")
        for i in range(nst[0]):
            e("v_mov_b32 v2, s%d" % (sPROF + 2 * i))
            e("buffer_store_dword v2, v1, s[8:11], 0 offen offset:%d" % (4 * i))
            e("v_mov_b32 v3, s%d" % (sPROF + 2 * i + 1))
            e("buffer_store_dword v3, v1, s[8:11], 0 offen offset:%d" % (64 + 4 * i))
            e("s_nop 1")
    return stamp, store

def header(name):
    return ".text\n.globl %s\n.p2align 8\n.type %s,@function\n%s:\n" % (name, name, name)

def desc(name, vgpr, accum, sgpr=102):
    return (".amdhsa_kernel %s\n  .amdhsa_next_free_vgpr %d\n  .amdhsa_next_free_sgpr %d\n"
            "  .amdhsa_accum_offset %d\n  .amdhsa_group_segment_fixed_size 0\n  .amdhsa_kernarg_size 96\n"
            "  .amdhsa_user_sgpr_count 2\n  .amdhsa_user_sgpr_kernarg_segment_ptr 1\n"
            "  .amdhsa_system_sgpr_workgroup_id_x 1\n  .amdhsa_float_denorm_mode_32 3\n"
            "  .amdhsa_float_denorm_mode_16_64 3\n.end_amdhsa_kernel\n" % (name, vgpr, sgpr, accum))
```

```python
import sys
from asmlib import *
from common import srd, header, desc

def kern(name, body, iters, nthreads):
    p = Prog(); e = p.e
    e("s_load_dwordx2 s[4:5], s[0:1], 0")
    e("s_load_dwordx2 s[6:7], s[0:1], 8")
    e("v_lshrrev_b32 v1, 6, v0")
    e("v_lshlrev_b32 v2, 4, v0")
    e("v_readfirstlane_b32 s40, v1")
    e("s_waitcnt lgkmcnt(0)")
    srd(p, 8, 4, 1 << 24)
    e("s_lshl_b32 s3, s2, 16")
    for i in range(28):
        e("s_add_u32 s20, s3, %d" % ((i % 8) * 8192))
        e("buffer_load_dwordx4 %s, v2, s[8:11], s20 offen offset:%d" % (vr(16 + 4 * i, 4), (i // 8) * 16))
    nacc = 128 if nthreads == 512 else 256
    for i in range(16):
        e("s_add_u32 s20, s3, %d" % ((i % 8) * 8192))
        e("buffer_load_dwordx4 %s, v2, s[8:11], s20 offen offset:%d" % (ar(nacc - 64 + 4 * i, 4), 64 + (i // 8) * 16))
    for i in range(nacc - 64): e("v_accvgpr_write_b32 a%d, 0" % i)
    for i in range(4, 12): e("v_mov_b32 v%d, 0" % i)
    for i in range(12, 16): e("v_mov_b32 v%d, 0x3f803f80" % i)
    e("s_waitcnt vmcnt(0)")
    for i in range(8):
        e("ds_write_b128 v2, %s offset:%d" % (vr(16 + 4 * i, 4), i * 8192))
        if nthreads == 256: e("ds_write_b128 v2, %s offset:%d" % (vr(48 + 4 * i, 4), i * 8192 + 4096))
    e("v_and_b32 v3, 63, v0")
    e("v_lshlrev_b32 v1, 3, v3")
    e("v_lshlrev_b32 v3, 4, v3")
    e("s_waitcnt lgkmcnt(0)")
    e("s_barrier")
    e("s_memtime s[24:25]"); e("s_memrealtime s[26:27]"); e("s_waitcnt lgkmcnt(0)")
    e("s_mov_b32 s30, 0")
    e(".p2align 6")
    e("L_%s:" % name)
    for t in body: e(t)
    e("s_add_u32 s30, s30, 1"); e("s_cmp_lt_u32 s30, %d" % iters); e("s_cbranch_scc1 L_%s" % name)
    e("s_nop 15")
    e("s_waitcnt lgkmcnt(0)")
    e("s_memtime s[32:33]"); e("s_memrealtime s[34:35]"); e("s_waitcnt lgkmcnt(0)")
    e("s_sub_u32 s32, s32, s24"); e("s_sub_u32 s34, s34, s26")
    e("s_lshl_b32 s3, s2, 2"); e("s_and_b32 s40, s40, 3"); e("s_add_u32 s3, s3, s40"); e("s_lshl_b32 s3, s3, 3")
    srd(p, 12, 6, 8, "s3")
    e("v_mov_b32 v1, 0"); e("v_mov_b32 v2, s32"); e("v_mov_b32 v3, s34")
    e("buffer_store_dwordx2 v[2:3], v1, s[12:15], 0 offen")
    e("s_endpgm")
    return header(name) + p.text(), desc(name, 128 + nacc, 128)

M32 = "v_mfma_f32_32x32x16_bf16"; M16 = "v_mfma_f32_16x16x32_bf16"
def F(i): return vr(16 + 4 * (i % 8), 4)

def stream(shape, nq, summode, order, waits=True):
    nacc = 128 if nq == 32 else 256
    Q0 = nacc - 64
    bb = []
    if shape == 32:
        nqb = nq // 32
        for ks in range(8):
            for qb in range(nqb):
                c = vr(64 + qb * 16, 16)
                bb.append(("%s %s, %s, %s, %s" % (M32, c, F(ks), ar(Q0 + (qb * 8 + ks) * 4, 4), c), ("K", ks) if qb == 0 else None))
        for i in range(8):
            for qb in range(nqb):
                c = ar(((i % 4) * nqb + qb) * 16, 16)
                bb.append(("%s %s, %s, %s, %s" % (M32, c, F(8 + i), vr(48 + (qb * 2 + i // 4) * 4, 4), c), ("V", 8 + i) if qb == 0 else None))
    else:
        nqb = nq // 16
        for kb in range(2):
            if order == "chain":
                seq = [(qb, ks) for qb in range(nqb) for ks in range(4)]
            else:
                seq = [(qb, ks) for ks in range(4) for qb in range(nqb)]
            for n, (qb, ks) in enumerate(seq):
                c = vr(64 + (kb * nqb + qb) * 4, 4)
                bb.append(("%s %s, %s, %s, %s" % (M16, c, F(kb * 4 + ks), ar(Q0 + (qb * 4 + ks) * 4, 4), c), ("K", kb * 4 + n // nqb) if n % nqb == 0 else None))
        for i in range(8):
            for qb in range(nqb):
                c = ar((i * nqb + qb) * 4, 4)
                bb.append(("%s %s, %s, %s, %s" % (M16, c, F(8 + i), vr(48 + qb * 4, 4), c), ("V", 8 + i) if qb == 0 else None))
        if summode == "mfma":
            for qb in range(nqb):
                c = ar((8 * nqb + qb) * 4 if nq == 64 else 0 + qb * 4, 4)
                bb.append(("%s %s, v[12:15], %s, %s" % (M16, c, vr(48 + qb * 4, 4), c), None))
    n = len(bb)
    gaps = [[] for _ in range(n)]
    nel = nq // 2
    items = []
    for s in range(nel):
        items.append(("v_exp_f32 v%d, v%d" % (4 + s % 4, 96 + s % 32), 8))
        if summode == "add": items.append(("v_add_f32 v%d, v%d, v%d" % (8 + s % 2, 8 + s % 2, 4 + (s + 2) % 4), 4))
        if summode == "pk" and s % 2: items.append(("v_pk_add_f32 v[8:9], v[8:9], v[%d:%d]" % (4 + (s + 1) % 4, 5 + (s + 1) % 4), 4))
        if s % 2: items.append(("v_cvt_pk_bf16_f32 v%d, v%d, v%d" % (10 + (s // 2) % 2, 4 + (s + 1) % 4, 5 + (s + 1) % 4), 4))
    cost = [0] * n
    for i, (t, fr) in enumerate(bb):
        if fr:
            f = (fr[1] + 5) % 16
            if f < 8:
                gaps[i].append("ds_read_b128 %s, v3 offset:%d" % (F(f), f * 1024)); cost[i] += 4
            else:
                gaps[i].append("ds_read_b64_tr_b16 v[%d:%d], v1 offset:%d" % (16 + 4 * (f % 8), 17 + 4 * (f % 8), f * 1024)); cost[i] += 4
                j = (i + 1) % n if len(bb) > 16 else i
                gaps[j].append("ds_read_b64_tr_b16 v[%d:%d], v1 offset:%d" % (18 + 4 * (f % 8), 19 + 4 * (f % 8), f * 1024 + 512)); cost[j] += 4
            if waits and fr[1] % 2 == 0:
                gaps[i - 1].append("W"); cost[i - 1] += 4
    tot = sum(c for _, c in items) + sum(cost)
    acc = 0; g = 0; run = cost[0]
    for t, c in items:
        while g < n - 1 and run + c / 2 > tot * (g + 1) / n:
            g += 1; run += cost[g]
        gaps[g].append(t); run += c
    out = []
    for i in range(n):
        out.append(bb[i][0])
        w = "W" in gaps[i]
        out += [x for x in gaps[i] if x != "W"]
        if w: out.append("s_waitcnt lgkmcnt(5)")
    return out

V = {}
for shape in (32, 16):
    for nq in (64, 32):
        for sm in (("add", "pk") if shape == 32 else ("add", "pk", "mfma")):
            for order in (("alt",) if shape == 32 else ("alt", "chain")):
                V["s%d_q%d_%s_%s" % (shape, nq, sm, order)] = (stream(shape, nq, sm, order) * 2, 256 if nq == 64 else 512)
out = ""
for k in V: out += "; @launch kernel=%s_kernel grid=(256,1,1) block=(%d,1,1) lds=65536\n" % (k, V[k][1])
out += '.amdgcn_target "amdgcn-amd-amdhsa--gfx950"\n'
ks = [kern(k + "_kernel", V[k][0], 32, V[k][1]) for k in V]
for t, _ in ks: out += t
out += '.section .rodata,"a"\n'
for _, d in ks: out += ".p2align 6\n" + d
open("mb2.s", "w").write(out)
```

```python
from mb2 import kern, M16
from asmlib import *
cnt = [0]
def ins(k):
    c = cnt[0]; cnt[0] += 1
    if k == "e": return "v_exp_f32 v%d, v%d" % (4 + c % 4, 96 + c % 32)
    if k == "c": return "v_cvt_pk_bf16_f32 v%d, v%d, v%d" % (10 + c % 2, 100 + c % 8, 110 + c % 8)
    if k == "a": return "v_add_f32 v%d, v%d, v%d" % (8 + c % 2, 100 + c % 8, 110 + c % 8)
    if k == "t": return "ds_read_b64_tr_b16 v[%d:%d], v1 offset:%d" % (64 + 2 * (c % 16), 65 + 2 * (c % 16), (c % 32) * 512)
    if k == "b": return "ds_read_b128 v[%d:%d], v3 offset:%d" % (64 + 4 * (c % 8), 67 + 4 * (c % 8), (c % 32) * 1024)
    if k == "s": return "s_add_u32 s50, s50, 1"
    if k == "w": return "s_waitcnt lgkmcnt(15)"
    if k == "n": return "s_nop 0"
    if k == "r": return "v_accvgpr_read_b32 v%d, a%d" % (8 + c % 2, 200 + c % 8)
    if k == "d": return "buffer_load_dwordx4 v2, s[8:11], s3 offen offset:%d lds" % ((c % 4) * 1024)
    if k == "l": return "buffer_load_dwordx4 v[%d:%d], v2, s[8:11], s3 offen offset:%d" % (64 + 4 * (c % 8), 67 + 4 * (c % 8), (c % 4) * 1024)
pats = ["e,e,e,e,e,e,e,e,e,e,e,e,e,e,e,e", "e,e,e,e,e,e,e,e,e,e,e,e,e,e,e,d", "e,e,e,e,e,e,e,e,e,e,e,e,e,e,d,", "e,e,e,e,e,e,e,e,e,e,e,e,e,e,,d", "e,e,e,e,e,e,e,e,e,e,e,e,e,,d,",
        "e,e,e,e,e,e,e,e,e,e,e,e,e,d,,", "e,e,e,e,e,e,e,e,e,e,e,e,,,d,", "e,e,e,e,e,e,e,e,e,e,e,e,d,,,", "e,e,e,e,e,e,e,e,e,e,e,e,e,d,t,t", "e,e,e,e,e,e,e,e,e,e,e,e,e,d,tt,tt",
        "e,e,e,e,e,e,e,e,e,e,e,e,e,d,c,c", "e,e,e,e,e,e,e,e,e,e,e,e,d,d,,", "e,e,e,e,e,e,e,e,e,e,e,e,dd,,,",
        "st,", "ts,", "t,t,sd,", "t,t,d,s", "t,t,s,d", "tl,tl,l,l,t,t,,,t,t,,,t,t,,,t,t,,,t,t,,,t,t,,,t,t,,", "t,t,l,,t,t,l,,t,t,l,,t,t,l,,t,t,,,t,t,,,t,t,,,t,t,,", "tt,,l,,tt,,l,,tt,,l,,tt,,l,,tt,,,,tt,,,,tt,,,,tt,,,",
        "t,t,l,", "tt,,l,", "tt,l,,", "t,t,d,", "tt,d,,", "tt,,d,", "wt,", "tw,", "e,tw", "e,wt", "e,ts", "e,st", "t,t,,w", "e,ta", "e,at", "e,sc", "e,ss", "e,sss"]
V = {}
for pi, pt in enumerate(pats):
    g = pt.split(",") if pt != "_" else [""]
    b = ["s_mov_b32 m0, 0x8000"]
    for n in range(128):
        c = ar((n % 32) * 4, 4)
        b.append("%s %s, %s, %s, %s" % (M16, c, vr(16 + 4 * ((n // 4) % 8), 4), vr(48 + 4 * (n % 4), 4), c))
        for k in g[n % len(g)]: b.append(ins(k))
    nm = "p%02d_" % pi + pt.replace(",", "_")[-24:]
    V[nm] = b
out = ""
for k in V: out += "; @launch kernel=%s_kernel grid=(256,1,1) block=(256,1,1) lds=65536\n" % k
out += '.amdgcn_target "amdgcn-amd-amdhsa--gfx950"\n'
ks = [kern(k + "_kernel", V[k], 32, 256) for k in V]
for t, _ in ks: out += t
out += '.section .rodata,"a"\n'
for _, d in ks: out += ".p2align 6\n" + d
open("mb4.s", "w").write(out)
```

```python
import sys, math
from asmlib import *

NAME = "recurrent_scan__mha_block_cached__geglu_ffn__prompt"
PROFILE = "--prof" in sys.argv

WS_XN = 0
XN_BYTES = 2048 * 576 * 2
WS_A3 = 4 << 20
A3_KS = 272
A3_BLK = A3_KS * 4096
A3_BYTES = 32 * A3_BLK
WS_FLAG = 3 << 20
FLAG_BYTES = 160 * 128
WS_P = 48 << 20
P_TILE = 16 * 72 * 1024
P_SLICE = 2048 * 576 * 4
WS_PROF = 200 << 20

LOG2E = 1.4426950408889634

def srd(p, d, base, nbytes, add=None):
    if add is None:
        p.e("s_mov_b32 s%d, s%d" % (d, base))
        p.e("s_mov_b32 s%d, s%d" % (d + 1, base + 1))
    else:
        p.e("s_add_u32 s%d, s%d, %s" % (d, base, add))
        p.e("s_addc_u32 s%d, s%d, 0" % (d + 1, base + 1))
    p.e("s_mov_b32 s%d, %s" % (d + 2, nbytes))
    p.e("s_mov_b32 s%d, 0x00020000" % (d + 3))

def profiler(p, which, sW, wpg=4):
    e = p.e
    on = "--prof" in sys.argv
    kidx = int(which[1]) - 1
    PR = [80, 82, 84, 86, 88, 90, 92, 94, 72, 100]
    nst = [0]
    def stamp(lvl=0):
        if lvl == 1 and "--tailprof" in sys.argv: return
        if lvl == 2 and "--tailprof" not in sys.argv: return
        if lvl == 3 and "--aprof" not in sys.argv: return
        if lvl == 4 and "--aprof" in sys.argv: return
        if on:
            e("s_memtime s[96:97]", drain_l=True)
            e("s_memrealtime s[98:99]")
            e("s_waitcnt lgkmcnt(0)")
            e("s_mov_b32 s%d, s96" % PR[nst[0]])
            e("s_mov_b32 s%d, s98" % (PR[nst[0]] + 1))
            nst[0] += 1
    def store():
        if not on: return
        e("s_waitcnt vmcnt(0)")
        stamp()
        e("s_load_dwordx2 s[4:5], s[0:1], 88")
        e("s_mul_i32 s3, s2, %d" % wpg)
        if sW is not None: e("s_add_u32 s3, s3, s%d" % sW)
        e("s_lshl_b32 s3, s3, 7")
        e("s_add_u32 s3, s3, %d" % (WS_PROF + kidx * (1 << 20)))
        e("s_waitcnt lgkmcnt(0)")
        srd(p, 8, 4, 128, "s3")
        e("v_mov_b32 v1, 0")
        for i in range(nst[0]):
            e("v_mov_b32 v2, s%d" % PR[i])
            e("buffer_store_dword v2, v1, s[8:11], 0 offen offset:%d" % (4 * i))
            e("v_mov_b32 v3, s%d" % (PR[i] + 1))
            e("buffer_store_dword v3, v1, s[8:11], 0 offen offset:%d" % (64 + 4 * i))
            e("s_nop 1")
    return stamp, store

def header(name):
    return ".text\n.globl %s\n.p2align 8\n.type %s,@function\n%s:\n" % (name, name, name)

def desc(name, vgpr, accum, sgpr=102):
    if "--prof" in sys.argv: sgpr = 102
    return (".amdhsa_kernel %s\n  .amdhsa_next_free_vgpr %d\n  .amdhsa_next_free_sgpr %d\n"
            "  .amdhsa_accum_offset %d\n  .amdhsa_group_segment_fixed_size 0\n  .amdhsa_kernarg_size 96\n"
            "  .amdhsa_user_sgpr_count 2\n  .amdhsa_user_sgpr_kernarg_segment_ptr 1\n"
            "  .amdhsa_system_sgpr_workgroup_id_x 1\n  .amdhsa_float_denorm_mode_32 3\n"
            "  .amdhsa_float_denorm_mode_16_64 3\n.end_amdhsa_kernel\n" % (name, vgpr, sgpr, accum))


def code_prefetch(p, sd, vtid, vtmp, start, end, nthreads, here, approx):
    e = p.e
    e("s_getpc_b64 s[%d:%d]" % (sd, sd + 1))
    e("%s:" % here)
    e("s_add_u32 s%d, s%d, %s-%s" % (sd, sd, start, here))
    e("s_addc_u32 s%d, s%d, 0" % (sd + 1, sd + 1))
    e("s_mov_b32 s%d, %s-%s" % (sd + 2, end, start))
    e("s_mov_b32 s%d, 0x00020000" % (sd + 3))
    e("v_lshlrev_b32 v%d, 6, v%d" % (vtmp, vtid))
    n = (approx + nthreads * 64 - 1) // (nthreads * 64)
    for i in range(n):
        e("buffer_load_dword v%d, v%d, s[%d:%d], 0 offen" % (vtmp + 1, vtmp, sd, sd + 3), vm=("CODE", here, i))
        if i + 1 < n: e("v_add_u32 v%d, %d, v%d" % (vtmp, nthreads * 64, vtmp))

def opt(name, default):
    for a in sys.argv:
        if a.startswith("--%s=" % name): return a[len(name) + 3:]
    return default
```

```python
from mb2 import kern, M16
from asmlib import *
cnt = [0]
def ins(k):
    c = cnt[0]; cnt[0] += 1
    if k == "e": return "v_exp_f32 v%d, v%d" % (4 + c % 4, 96 + c % 32)
    if k == "c": return "v_cvt_pk_bf16_f32 v%d, v%d, v%d" % (10 + c % 2, 100 + c % 8, 110 + c % 8)
    if k == "a": return "v_add_f32 v%d, v%d, v%d" % (8 + c % 2, 100 + c % 8, 110 + c % 8)
    if k == "t": return "ds_read_b64_tr_b16 v[%d:%d], v1 offset:%d" % (64 + 2 * (c % 16), 65 + 2 * (c % 16), (c % 32) * 512)
    if k == "b": return "ds_read_b128 v[%d:%d], v3 offset:%d" % (64 + 4 * (c % 8), 67 + 4 * (c % 8), (c % 32) * 1024)
    if k == "o": return "v_dot2c_f32_bf16 v%d, v%d, v12" % (8 + c % 2, 100 + c % 8)
    if k == "O": return "v_dot2_f32_bf16 v%d, v%d, v12, v%d" % (8 + c % 2, 100 + c % 8, 8 + c % 2)
    if k == "p": return "v_pk_add_f32 v[8:9], v[8:9], v[%d:%d]" % (100 + 2 * (c % 4), 101 + 2 * (c % 4))
    if k == "3": return "v_add3_u32 v8, v8, v%d, v%d" % (100 + c % 8, 110 + c % 8)
    if k == "f": return "v_fma_f32 v%d, v%d, v%d, v%d" % (8 + c % 2, 100 + c % 8, 110 + c % 8, 8 + c % 2)
    if k == "s": return "s_add_u32 s50, s50, 1"
    if k == "w": return "s_waitcnt lgkmcnt(15)"
    if k == "n": return "s_nop 0"
    if k == "r": return "v_accvgpr_read_b32 v%d, a%d" % (8 + c % 2, 200 + c % 8)
    if k == "d": return "buffer_load_dwordx4 v2, s[8:11], s3 offen offset:%d lds" % ((c % 4) * 1024)
    if k == "l": return "buffer_load_dwordx4 v[%d:%d], v2, s[8:11], s3 offen offset:%d" % (64 + 4 * (c % 8), 67 + 4 * (c % 8), (c % 4) * 1024)
pats = ["e,", "e,o", "e,O", "e,oo", "e,to", "e,co", "e,oc", "o,", "o,,,", "O,,,", "e,e,tc,e,e,tc,e,e,tc,e,e,tc,t,d,t,", "e,e,tc,e,e,tc,e,e,tc,e,e,tc,to,d,to,oo",
        "e,e,tc,e,e,tc,e,e,tc,e,e,tc,ta,d,ta,aa", "e,e,tca,e,e,tca,e,e,tca,e,e,tca,ta,d,ta,aa", "e,p", "p,,,", "e,e,tc,e,e,tc,e,e,tc,e,e,tc,tO,d,tO,OO", "e,f", "e,ff"]
V = {}
for pi, pt in enumerate(pats):
    g = pt.split(",") if pt != "_" else [""]
    b = ["s_mov_b32 m0, 0x8000"]
    for n in range(128):
        c = ar((n % 32) * 4, 4)
        b.append("%s %s, %s, %s, %s" % (M16, c, vr(16 + 4 * ((n // 4) % 8), 4), vr(48 + 4 * (n % 4), 4), c))
        for k in g[n % len(g)]: b.append(ins(k))
    nm = "p%02d_" % pi + pt.replace(",", "_")[-24:]
    V[nm] = b
out = ""
for k in V: out += "; @launch kernel=%s_kernel grid=(256,1,1) block=(256,1,1) lds=65536\n" % k
out += '.amdgcn_target "amdgcn-amd-amdhsa--gfx950"\n'
ks = [kern(k + "_kernel", V[k], 32, 256) for k in V]
for t, _ in ks: out += t
out += '.section .rodata,"a"\n'
for _, d in ks: out += ".p2align 6\n" + d
open("mb4.s", "w").write(out)
```
